```python
import torch

def _softmax(x, axis=-1):
    return torch.softmax(x, dim=axis)
def _gelu(x):
    return torch.nn.functional.gelu(x, approximate="tanh")
def _silu(x):
    return torch.nn.functional.silu(x)
def _sigmoid(x):
    return torch.sigmoid(x)
def _layernorm(x, axis=-1, eps=1e-5):
    m = x.mean(dim=axis, keepdim=True)
    v = x.var(dim=axis, keepdim=True, unbiased=False)
    return (x - m) / torch.sqrt(v + eps)
def _scatter_add(tgt, idx, src, axis=0):
    return tgt.clone().index_add_(axis, idx, src)
def _segment_sum(src, seg, n):
    out = torch.zeros((n,) + src.shape[1:], dtype=src.dtype)
    return out.index_add_(0, seg, src)
def _pad(x, pw):
    flat = tuple(v for pair in reversed(pw) for v in pair)
    return torch.nn.functional.pad(x, flat)

kernel_name = 'sequential_preLN__gqa_block_cached__geglu_ffn__decode'

def setup_inputs():

    _w = (lambda a: (lambda t: t.to(torch.bfloat16) if t.is_floating_point() else t)(torch.as_tensor(a)))
    def _A_setup():
        B, Sq, D = 4, 1, 640
        Hq, Hkv, Sk, Dh = 32, 32, 4096, 128
        assert Hq % Hkv == 0, (Hq, Hkv)
        return {
            "x": _w((lambda *s: torch.randn(*s, dtype=torch.bfloat16) * 0.05)(B, Sq, D)),
            "k_cache": _w((lambda *s: torch.randn(*s, dtype=torch.bfloat16) * 3.2)(B, Hkv, Sk, Dh)),
            "v_cache": _w((lambda *s: torch.randn(*s, dtype=torch.bfloat16) * 0.4)(B, Hkv, Sk, Dh)),
            "wq": _w((lambda *s: torch.randn(*s, dtype=torch.bfloat16) * 3.2)(D, Hq * Dh) * (D ** -0.5)),
            "wo": _w((lambda *s: torch.randn(*s, dtype=torch.bfloat16) * 0.4)(Hq * Dh, D) * ((Hq * Dh) ** -0.5)),
        }
    _A_in = _A_setup()

    def _B_setup():
        B, S, D, F = 4, 1, 640, 1728
        return {
            "x": _w((lambda *s: torch.randn(*s, dtype=torch.bfloat16) * 0.05)(B, S, D)),
            "w_gate": _w((lambda *s: torch.randn(*s, dtype=torch.bfloat16) * 0.05)(D, F)),
            "w_up": _w((lambda *s: torch.randn(*s, dtype=torch.bfloat16) * 0.05)(D, F)),
            "w_down": _w((lambda *s: torch.randn(*s, dtype=torch.bfloat16) * 0.05)(F, D)),
        }
    _B_in = _B_setup()

    return {
        "A_x": _A_in["x"],
        "A_k_cache": _A_in["k_cache"],
        "A_v_cache": _A_in["v_cache"],
        "A_wq": _A_in["wq"],
        "A_wo": _A_in["wo"],
        "B_x": _B_in["x"],
        "B_w_gate": _B_in["w_gate"],
        "B_w_up": _B_in["w_up"],
        "B_w_down": _B_in["w_down"],
    }

def reference(A_x, A_k_cache, A_v_cache, A_wq, A_wo, B_x, B_w_gate, B_w_up, B_w_down):
    def _A_ref(x, k_cache, v_cache, wq, wo):
        B, Sq, D = x.shape
        Hq, Dh = 32, 128
        Hkv = k_cache.shape[1]
        rep = Hq // Hkv
        q = (lambda x, *d: x.permute(*d))((x @ wq).reshape(B, Sq, Hq, Dh), 0, 2, 1, 3)
        k = (lambda x, n, axis: torch.repeat_interleave(x, n, dim=axis))(k_cache, rep, axis=1)
        v = (lambda x, n, axis: torch.repeat_interleave(x, n, dim=axis))(v_cache, rep, axis=1)
        scores = torch.einsum("bhqd,bhkd->bhqk", q, k) * (Dh ** -0.5)
        p = _softmax(scores, axis=-1)
        o = torch.einsum("bhqk,bhkd->bhqd", p, v)
        return (lambda x, *d: x.permute(*d))(o, 0, 2, 1, 3).reshape(B, Sq, Hq * Dh) @ wo

    def _B_ref(x, w_gate, w_up, w_down):
        return (_gelu(x @ w_gate) * (x @ w_up)) @ w_down

    x = A_x
    h = x + _A_ref(_layernorm(x, axis=-1), A_k_cache, A_v_cache, A_wq, A_wo)
    h2 = h + _B_ref(_layernorm(h, axis=-1), B_w_gate, B_w_up, B_w_down)
    return h2
```

```python
from dsl import *

NAME = "sequential_preLN__gqa_block_cached__geglu_ffn__decode"
LOG2E = "0x3fb8aa3b"
SCALE = "0x3db504f3"
INV640 = "0x3acccccd"
EPS = "0x3727c5ac"
HIMASK = "0xffff0000"

S_X, S_K, S_V, S_WQ, S_WO, S_BX, S_WG, S_WU, S_WD, S_OUT, S_DBG, S_WS = 16, 18, 20, 22, 24, 26, 28, 30, 32, 34, 36, 38

HEADER_COMMENTS = """; Kernarg layout (96 bytes, ptrs only, base s[0:1]):
"""


def kernel_begin(a, label):
    a.raw(".globl %s\n.p2align 8\n.type %s,@function\n%s:" % (label, label, label))
    a.hist = []
    a.vm = []


def load_kernargs(a):
    a("s_load_dwordx16 s[16:31], s[0:1], 0")
    a("s_load_dwordx8 s[32:39], s[0:1], 64")


def srd(a, d, ptr, size, off=0):
    if off:
        a("s_add_u32 s%d, s%d, 0x%x" % (d, ptr, off))
        a("s_addc_u32 s%d, s%d, 0" % (d + 1, ptr + 1))
    else:
        a("s_mov_b32 s%d, s%d" % (d, ptr))
        a("s_mov_b32 s%d, s%d" % (d + 1, ptr + 1))
    a("s_mov_b32 s%d, 0x%x" % (d + 2, size))
    a("s_mov_b32 s%d, 0x20000" % (d + 3))


def descriptor(label, vgprs, sgprs=102):
    nv = (vgprs + 7) // 8 * 8
    return ('.p2align 6\n.amdhsa_kernel %s\n  .amdhsa_next_free_vgpr %d\n  .amdhsa_next_free_sgpr %d\n  .amdhsa_accum_offset %d\n'
            '  .amdhsa_group_segment_fixed_size 0\n  .amdhsa_kernarg_size 96\n  .amdhsa_user_sgpr_count 2\n'
            '  .amdhsa_user_sgpr_kernarg_segment_ptr 1\n  .amdhsa_system_sgpr_workgroup_id_x 1\n.end_amdhsa_kernel\n' % (label, nv, sgprs, nv))


DPPF = "row_mask:0xf bank_mask:0xf"


def bf16r(a, d, s):
    a("v_cvt_pk_bf16_f32 v%d, v%d, v%d" % (d, s, s))
    a("v_and_b32 v%d, %s, v%d" % (d, HIMASK, d))


def allreduce16(a, op, x):
    for n in (8, 4, 2, 1):
        a("%s_dpp v%d, v%d, v%d row_ror:%d %s" % (op, x, x, x, n, DPPF))


def allreduce_rows(a, op, x, t):
    a("v_mov_b32 v%d, v%d" % (t, x))
    a("v_permlane32_swap_b32 v%d, v%d" % (t, x))
    a("%s v%d, v%d, v%d" % (op, x, t, x))
    a("v_mov_b32 v%d, v%d" % (t, x))
    a("v_permlane16_swap_b32 v%d, v%d" % (t, x))
    a("%s v%d, v%d, v%d" % (op, x, t, x))


def allreduce64(a, op, x, t):
    allreduce16(a, op, x)
    allreduce_rows(a, op, x, t)


def treduce_rows(a, regs):
    assert len(regs) % 4 == 0
    groups = [regs[i:i + 4] for i in range(0, len(regs), 4)]
    for g in groups:
        a("v_permlane32_swap_b32 v%d, v%d" % (g[0], g[1]))
        a("v_permlane32_swap_b32 v%d, v%d" % (g[2], g[3]))
    for g in groups:
        a("v_add_f32 v%d, v%d, v%d" % (g[0], g[0], g[1]))
        a("v_add_f32 v%d, v%d, v%d" % (g[2], g[2], g[3]))
    for g in groups:
        a("v_permlane16_swap_b32 v%d, v%d" % (g[0], g[2]))
    for g in groups:
        a("v_add_f32 v%d, v%d, v%d" % (g[0], g[0], g[2]))
    return [g[0] for g in groups]


def treduce_bit3(a, regs, outs):
    for i, o in enumerate(outs):
        r0, r1 = regs[2 * i], regs[2 * i + 1]
        a("v_add_f32_dpp v%d, v%d, v%d row_ror:8 row_mask:0xf bank_mask:0x3" % (o, r0, r0))
        a("v_add_f32_dpp v%d, v%d, v%d row_ror:8 row_mask:0xf bank_mask:0xc" % (o, r1, r1))
    return outs


def treduce_bit2(a, regs, outs):
    for i, o in enumerate(outs):
        r0, r1 = regs[2 * i], regs[2 * i + 1]
        a("v_add_f32_dpp v%d, v%d, v%d row_shl:4 row_mask:0xf bank_mask:0x5" % (o, r0, r0))
        a("v_add_f32_dpp v%d, v%d, v%d row_shr:4 row_mask:0xf bank_mask:0xa" % (o, r1, r1))
    return outs


def layernorm10(a, E, T):
    s, t, mean, var, mb, sd, rc = T[0], T[1], T[2], T[3], T[4], T[5], T[6]
    D = T[6:16]
    a("v_add_f32 v%d, v%d, v%d" % (s, E[0], E[1]))
    for i in range(2, 10):
        a("v_add_f32 v%d, v%d, v%d" % (s, s, E[i]))
    allreduce64(a, "v_add_f32", s, t)
    a("v_mul_f32 v%d, %s, v%d" % (mean, INV640, s))
    for i in range(10):
        a("v_sub_f32 v%d, v%d, v%d" % (D[i], E[i], mean))
    a("v_mul_f32 v%d, v%d, v%d" % (s, D[0], D[0]))
    for i in range(1, 10):
        a("v_fmac_f32 v%d, v%d, v%d" % (s, D[i], D[i]))
    allreduce64(a, "v_add_f32", s, t)
    a("v_mul_f32 v%d, %s, v%d" % (var, INV640, s))
    bf16r(a, mb, mean)
    bf16r(a, var, var)
    a("v_add_f32 v%d, %s, v%d" % (var, EPS, var))
    bf16r(a, var, var)
    a("v_sqrt_f32 v%d, v%d" % (sd, var))
    bf16r(a, sd, sd)
    rc = s
    a("v_rcp_f32 v%d, v%d" % (rc, sd))
    for i in range(10):
        a("v_sub_f32 v%d, v%d, v%d" % (E[i], E[i], mb))
    for i in range(10):
        bf16r(a, E[i], E[i])
    for i in range(10):
        a("v_mul_f32 v%d, v%d, v%d" % (D[i], E[i], rc))
    for i in range(10):
        a("v_fma_f32 v%d, -v%d, v%d, v%d" % (E[i], D[i], sd, E[i]))
    for i in range(10):
        a("v_fmac_f32 v%d, v%d, v%d" % (D[i], E[i], rc))
    for i in range(10):
        bf16r(a, E[i], D[i])


def idx_row(a, d, g, t):
    a("v_and_b32 v%d, 1, v%d" % (d, g))
    a("v_lshlrev_b32 v%d, 1, v%d" % (d, d))
    a("v_lshrrev_b32 v%d, 1, v%d" % (t, g))
    a("v_or_b32 v%d, v%d, v%d" % (d, d, t))
```

```python
import re

REG_RE = re.compile(r"\b([vs])(\d+)\b|\b([vs])\[(\d+):(\d+)\]|\b(vcc|exec|m0|scc)\b")

TRANS = ("v_exp_f32", "v_log_f32", "v_rcp_f32", "v_rsq_f32", "v_sqrt_f32", "v_sin_f32", "v_cos_f32", "v_rcp_iflag_f32")


def regs_of(opnd):
    out = []
    for m in REG_RE.finditer(opnd):
        if m.group(1):
            out.append(m.group(1) + m.group(2))
        elif m.group(3):
            out += [m.group(3) + str(i) for i in range(int(m.group(4)), int(m.group(5)) + 1)]
        else:
            n = m.group(6)
            if n == "vcc":
                out += ["vcc"]
            else:
                out.append(n)
    return out


def split_operands(s):
    parts, depth, cur = [], 0, ""
    for ch in s:
        if ch == "[":
            depth += 1
        if ch == "]":
            depth -= 1
        if ch == "," and depth == 0:
            parts.append(cur.strip())
            cur = ""
        else:
            cur += ch
    if cur.strip():
        parts.append(cur.strip())
    return parts


class Ins:
    __slots__ = ("op", "text", "dst", "src", "kind", "dpp", "ws", "storedata", "accsrc")


class Asm:
    def __init__(self):
        self.lines = []
        self.hist = []
        self.pos = 0
        self.vm = []
        self.nlabel = 0

    def raw(self, text):
        self.lines.append(text)

    def comment(self, t):
        self.lines.append("  ; " + t)

    def label(self, name, pad=True):
        if pad:
            self._nop(5)
        self.lines.append(name + ":")
        self.hist = []

    def newlabel(self, base="L"):
        self.nlabel += 1
        return "%s_%d" % (base, self.nlabel)

    def _nop(self, n):
        while n > 0:
            k = min(n, 16)
            self.lines.append("  s_nop %d" % (k - 1))
            self.pos += k
            n -= k

    def nop(self, n):
        self._nop(n)

    def _parse(self, text):
        t = text.strip()
        sp = t.split(None, 1)
        op = sp[0]
        rest = sp[1] if len(sp) > 1 else ""
        ins = Ins()
        ins.op = op
        ins.text = t
        ins.dpp = ("_dpp" in op) or (" row_" in t) or ("quad_perm" in t)
        rest2 = re.sub(r"\b(offen|idxen|nt|sc0|sc1|lds|glc|off)\b", "", rest)
        rest2 = re.sub(r"\b(offset\d?|row_\w+|bank_mask|quad_perm|bound_ctrl|op_sel\w*|neg_\w+|vmcnt|lgkmcnt|expcnt|dst_sel|src\d_sel|dst_unused):?\S*", "", rest2)
        ops = split_operands(rest2)
        base = op.replace("_e32", "").replace("_e64", "").replace("_dpp", "").replace("_sdwa", "")
        ins.storedata = []
        ins.accsrc = []
        dst, src = [], []
        if op.startswith("v_"):
            ins.kind = "valu"
            if base in TRANS:
                ins.kind = "trans"
            if base.startswith("v_dot"):
                ins.kind = "dl"
            if base.startswith("v_permlane"):
                ins.kind = "perm"
                dst = regs_of(ops[0]) + regs_of(ops[1])
                src = list(dst)
            elif base.startswith("v_cmp"):
                dst = regs_of(ops[0])
                for o in ops[1:]:
                    src += regs_of(o)
                if base.startswith("v_cmpx"):
                    dst.append("exec")
            elif base in ("v_readlane_b32", "v_readfirstlane_b32"):
                ins.kind = "rdlane"
                dst = regs_of(ops[0])
                for o in ops[1:]:
                    src += regs_of(o)
            elif base in ("v_add_co_u32", "v_sub_co_u32", "v_addc_co_u32", "v_subb_co_u32", "v_subrev_co_u32"):
                dst = regs_of(ops[0]) + regs_of(ops[1])
                for o in ops[2:]:
                    src += regs_of(o)
            else:
                dst = regs_of(ops[0])
                for o in ops[1:]:
                    src += regs_of(o)
                if base in ("v_fmac_f32", "v_dot2c_f32_bf16", "v_pk_fmac_f16", "v_writelane_b32") or ins.dpp:
                    if base in ("v_dot2c_f32_bf16",):
                        ins.accsrc = list(dst)
                    else:
                        src += dst
                if base == "v_dot2_f32_bf16":
                    ins.accsrc = regs_of(ops[3])
                    src = regs_of(ops[1]) + regs_of(ops[2])
                if base == "v_cndmask_b32" and len(ops) == 3:
                    src.append("vcc")
        elif op.startswith("buffer_") or op.startswith("global_") or op.startswith("flat_"):
            ins.kind = "vmem"
            if "load" in op:
                dst = regs_of(ops[0])
                for o in ops[1:]:
                    src += regs_of(o)
            elif "atomic" in op:
                for o in ops:
                    src += regs_of(o)
                if " sc0" in t:
                    dst = regs_of(ops[0])
            elif op in ("buffer_wbl2", "buffer_inv"):
                pass
            else:
                for o in ops:
                    src += regs_of(o)
                if op.startswith("buffer_store"):
                    ins.storedata = regs_of(ops[0])
                else:
                    ins.storedata = regs_of(ops[1])
                if not (op.endswith("x3") or op.endswith("x4")):
                    ins.storedata = []
        elif op.startswith("ds_"):
            ins.kind = "ds"
            if op.startswith("ds_read") or op.startswith("ds_bpermute") or op.startswith("ds_permute") or op.startswith("ds_swizzle") or "_rtn" in op:
                dst = regs_of(ops[0])
                for o in ops[1:]:
                    src += regs_of(o)
            else:
                for o in ops:
                    src += regs_of(o)
        elif op.startswith("s_"):
            ins.kind = "salu"
            if op.startswith("s_cmp") or op.startswith("s_cbranch") or op in ("s_branch", "s_waitcnt", "s_barrier", "s_nop", "s_endpgm", "s_sleep", "s_setprio", "s_bitcmp0_b32", "s_bitcmp1_b32"):
                for o in ops:
                    src += regs_of(o)
            else:
                if ops:
                    dst = regs_of(ops[0])
                for o in ops[1:]:
                    src += regs_of(o)
                if "saveexec" in op:
                    dst.append("exec")
        else:
            raise ValueError("unknown op " + op)
        ins.dst = dst
        ins.src = src
        return ins

    def _need(self, new):
        need = 0
        isvalu = new.kind in ("valu", "trans", "dl", "perm", "rdlane")
        allsrc = set(new.src) | set(new.accsrc)
        for (p, ppos) in self.hist:
            dist = self.pos - ppos - 1
            pv = p.kind in ("valu", "trans", "dl", "perm", "rdlane")
            pd = set(p.dst)
            req = 0
            vd = {r for r in pd if r[0] == "v" and r != "vcc"}
            sd = {r for r in pd if r[0] == "s" or r in ("vcc", "exec", "m0")}
            if pv:
                if new.dpp and (vd & allsrc):
                    req = max(req, 2)
                if new.kind == "perm" and (vd & allsrc):
                    req = max(req, 2)
                if new.kind == "rdlane" and (vd & allsrc):
                    req = max(req, 1)
                if p.kind == "trans" and new.kind != "trans" and (vd & (allsrc | set(new.dst))):
                    req = max(req, 1)
                if p.kind == "dl":
                    same = (new.kind == "dl" and new.op.replace("_dpp", "").replace("_e32", "") == p.op.replace("_dpp", "").replace("_e32", ""))
                    if vd & set(new.src):
                        req = max(req, 3)
                    if (vd & set(new.accsrc)) and not same:
                        req = max(req, 3)
                    if (vd & set(new.dst)) and not same:
                        req = max(req, 3)
                if sd:
                    if isvalu and (sd & allsrc):
                        req = max(req, 2)
                        if new.kind == "rdlane":
                            req = max(req, 4)
                    if new.kind == "vmem" and (sd & allsrc):
                        req = max(req, 5)
                    if "exec" in sd:
                        if new.dpp:
                            req = max(req, 5)
                        if new.kind in ("rdlane", "perm"):
                            req = max(req, 4)
                    if new.kind == "salu" and (sd & allsrc) and not new.op.startswith("s_cbranch"):
                        req = max(req, 2)
            if p.storedata and (set(p.storedata) & set(new.dst)):
                req = max(req, 2)
            if p.kind == "salu" and "m0" in pd and new.kind in ("vmem", "ds"):
                req = max(req, 1)
            if req - dist > need:
                need = req - dist
        return need

    def __call__(self, text, tag=None):
        for t in text.split("\n"):
            t = t.strip()
            if not t:
                continue
            self._emit(t, tag)

    def _emit(self, t, tag=None):
        ins = self._parse(t)
        if ins.op == "s_nop":
            n = int(t.split()[1], 0) + 1
            self.lines.append("  " + t)
            self.pos += n
            return
        need = self._need(ins)
        if need > 0:
            self._nop(need)
        self.lines.append("  " + t)
        self.hist.append((ins, self.pos))
        self.pos += 1
        self.hist = [(p, q) for (p, q) in self.hist if self.pos - q <= 8]
        if ins.kind == "vmem" and ins.op not in ("buffer_wbl2", "buffer_inv"):
            self.vm.append(tag)
        if ins.op in ("buffer_wbl2", "buffer_inv"):
            self.vm.append(tag)

    def wait_vm(self, tag):
        idx = [i for i, t in enumerate(self.vm) if t == tag]
        if not idx:
            return
        last = idx[-1]
        n = len(self.vm) - 1 - last
        assert n <= 63, n
        self("s_waitcnt vmcnt(%d)" % n)
        self.vm = self.vm[last + 1:]

    def wait_vm_all(self):
        self("s_waitcnt vmcnt(0)")
        self.vm = []

    def text(self):
        return "\n".join(self.lines) + "\n"


class Alloc:
    def __init__(self, start=0, limit=256):
        self.next = start
        self.limit = limit
        self.names = {}

    def __call__(self, n=1, align=1, name=None):
        a = (self.next + align - 1) // align * align
        self.next = a + n
        assert self.next <= self.limit, "out of regs"
        if name:
            self.names[name] = a
        return a


def vr(a, n=1):
    return "v%d" % a if n == 1 else "v[%d:%d]" % (a, a + n - 1)


def sr(a, n=1):
    return "s%d" % a if n == 1 else "s[%d:%d]" % (a, a + n - 1)
```

```python
import sys
from common import *

WS_Y = 0
WS_ML = 0xA0000
WS_H = 0xA1000
WS_G = 0xA4000

a = Asm()
descs = []


def k_attn():
    lab = "attn_kernel"
    kernel_begin(a, lab)
    V = Alloc(1)
    lane = V(); l16 = V(); g = V(); voffkv = V(); vtr = V(); t0 = V(); t1 = V()
    Q = V(4, 4); ACC = V(8, 4); M = V(); L = V(); T = V(4, 4); U = V(2); S = V(); X = V(); P = V(); PL = V(); PH = V(); F = V()
    KB = V(16, 4); VB = V(16, 4)
    WB = V(80, 4)
    TM = V(64, 4)
    XH = V(20, 4)
    vwq = V(); vwo = V(); vlds = V()
    XN, QP, OP, ML, YP = 0, 2560, 6656, 10752, 10816
    LDS = YP + 8 * 2560
    sW, sHEAD, sB, sHALF, sKV, sT, sT2, sPIDX = 3, 4, 5, 6, 7, 8, 9, 10
    SK, SV, SWQ, SWO, SXD = 40, 44, 48, 52, 56
    a("s_cmp_ge_u32 s2, 256")
    a("s_cbranch_scc1 attn_end")
    load_kernargs(a)
    a("v_and_b32 v%d, 63, v0" % lane)
    a("v_lshrrev_b32 v%d, 6, v0" % t0)
    a("v_readfirstlane_b32 s%d, v%d" % (sW, t0))
    a("v_and_b32 v%d, 15, v0" % l16)
    a("v_lshrrev_b32 v%d, 4, v%d" % (g, lane))
    a("v_lshlrev_b32 v%d, 4, v%d" % (voffkv, lane))
    a("s_and_b32 s%d, s2, 7" % sHEAD)
    a("s_lshr_b32 s%d, s2, 3" % sT)
    a("s_and_b32 s%d, s%d, 3" % (sT2, sT))
    a("s_lshl_b32 s%d, s%d, 3" % (sT2, sT2))
    a("s_add_u32 s%d, s%d, s%d" % (sHEAD, sHEAD, sT2))
    a("s_lshr_b32 s%d, s%d, 2" % (sT, sT))
    a("s_lshr_b32 s%d, s%d, 1" % (sB, sT))
    a("s_and_b32 s%d, s%d, 1" % (sHALF, sT))
    a("s_lshl_b32 s%d, s%d, 5" % (sPIDX, sB))
    a("s_add_u32 s%d, s%d, s%d" % (sPIDX, sPIDX, sHEAD))
    a("s_lshl_b32 s%d, s%d, 1" % (sPIDX, sPIDX))
    a("s_add_u32 s%d, s%d, s%d" % (sPIDX, sPIDX, sHALF))
    a("s_lshl_b32 s%d, s%d, 19" % (sKV, sPIDX))
    a("s_lshl_b32 s%d, s%d, 12" % (sT, sW))
    a("s_add_u32 s%d, s%d, s%d" % (sKV, sKV, sT))
    idx_row(a, vtr, g, t0)
    a("v_lshlrev_b32 v%d, 2, v%d" % (vtr, vtr))
    a("v_lshl_add_u32 v%d, v%d, 5, v%d" % (vtr, l16, vtr))
    a("v_mul_u32_u24 v%d, 20, v%d" % (t0, g))
    a("s_mul_i32 s%d, s%d, 80" % (sT, sW))
    a("v_add_u32 v%d, s%d, v%d" % (t0, sT, t0))
    a("v_lshlrev_b32 v%d, 2, v%d" % (vlds, t0))
    a("v_lshlrev_b32 v%d, 13, v%d" % (vwq, t0))
    a("v_lshl_add_u32 v%d, v%d, 4, v%d" % (vwq, l16, vwq))
    a("s_lshl_b32 s%d, s%d, 4" % (sT, sW))
    a("v_lshlrev_b32 v%d, 2, v%d" % (t0, g))
    a("v_add_u32 v%d, s%d, v%d" % (t0, sT, t0))
    a("v_mul_u32_u24 v%d, 1280, v%d" % (vwo, t0))
    a("v_lshl_add_u32 v%d, v%d, 4, v%d" % (vwo, l16, vwo))
    vorow = V()
    a("v_lshlrev_b32 v%d, 2, v%d" % (vorow, t0))
    a("s_waitcnt lgkmcnt(0)")
    srd(a, SK, S_K, 0x8000000)
    srd(a, SV, S_V, 0x8000000)
    srd(a, SWQ, S_WQ, 640 * 4096 * 2)
    srd(a, SWO, S_WO, 640 * 4096 * 2)
    srd(a, SXD, S_X, 5120)
    E = list(range(TM, TM + 10)); XR = list(range(TM + 10, TM + 15)); LT = list(range(TM + 16, TM + 32))
    a("v_lshlrev_b32 v%d, 2, v%d" % (t0, lane))
    a("s_mul_i32 s%d, s%d, 1280" % (sT, sB))
    for i in range(5):
        a("buffer_load_dword v%d, v%d, s[%d:%d], s%d offen offset:%d" % (XR[i], t0, SXD, SXD + 3, sT, i * 256), tag="x")

    def issue_k(u):
        a("s_add_u32 s%d, s%d, %d" % (sT2, sKV, u * 32768))
        for j in range(4):
            a("buffer_load_dwordx4 %s, v%d, s[%d:%d], s%d offen offset:%d nt" % (vr(KB + 4 * j, 4), voffkv, SK, SK + 3, sT2, j * 1024), tag="k%d" % u)

    def issue_v(u):
        a("s_add_u32 s%d, s%d, %d" % (sT2, sKV, u * 32768))
        for j in range(4):
            a("buffer_load_dwordx4 %s, v%d, s[%d:%d], s%d offen offset:%d nt" % (vr(VB + 4 * j, 4), voffkv, SV, SV + 3, sT2, j * 1024), tag="v%d" % u)

    issue_k(0)
    issue_v(0)
    a("s_lshl_b32 s%d, s%d, 8" % (sT, sHEAD))
    for j in range(20):
        a("buffer_load_dwordx4 %s, v%d, s[%d:%d], s%d offen" % (vr(WB + 4 * j, 4), vwq, SWQ, SWQ + 3, sT), tag="wq%d" % j)
        if j < 19:
            a("s_add_u32 s%d, s%d, 8192" % (sT, sT))
    a.wait_vm("x")
    for i in range(5):
        a("v_lshlrev_b32 v%d, 16, v%d" % (E[2 * i], XR[i]))
        a("v_and_b32 v%d, %s, v%d" % (E[2 * i + 1], HIMASK, XR[i]))
    layernorm10(a, E, LT)
    a("v_lshlrev_b32 v%d, 3, v%d" % (t0, lane))
    for i in range(5):
        a("ds_write_b64 v%d, %s offset:%d" % (t0, vr(E[2 * i], 2), XN + i * 512))
    a("s_waitcnt lgkmcnt(0)")
    for i in range(5):
        a("ds_read_b128 %s, v%d offset:%d" % (vr(XH + 4 * i, 4), vlds, XN + 16 * i))
    for i in range(8):
        a("v_mov_b32 v%d, 0" % (ACC + i))
    a("s_waitcnt lgkmcnt(0)")
    for j in range(20):
        a.wait_vm("wq%d" % j)
        a("v_lshrrev_b32 v%d, 16, v%d" % (t0, XH + j))
        for k in range(4):
            a("v_dot2c_f32_bf16 v%d, v%d, v%d" % (ACC + 2 * k, WB + 4 * j + k, t0))
            a("v_dot2c_f32_bf16 v%d, v%d, v%d" % (ACC + 2 * k + 1, WB + 4 * j + k, XH + j))
    c = treduce_rows(a, list(range(ACC, ACC + 8)))
    a("s_lshl_b32 s%d, s%d, 9" % (sT, sW))
    a("v_add_u32 v%d, s%d, v%d" % (t0, sT, vtr))
    a("ds_write_b32 v%d, v%d offset:%d" % (t0, c[0], QP))
    a("ds_write_b32 v%d, v%d offset:%d" % (t0, c[1], QP + 16))
    a("s_waitcnt lgkmcnt(0)")
    a("s_barrier")
    a("v_lshlrev_b32 v%d, 5, v%d" % (t1, l16))
    for w in range(8):
        a("ds_read_b128 %s, v%d offset:%d" % (vr(TM + 8 * w, 4), t1, QP + w * 512))
        a("ds_read_b128 %s, v%d offset:%d" % (vr(TM + 8 * w + 4, 4), t1, QP + w * 512 + 16))
    a("s_waitcnt lgkmcnt(0)")
    for w in range(1, 8):
        for k in range(8):
            a("v_add_f32 v%d, v%d, v%d" % (TM + k, TM + k, TM + 8 * w + k))
    for k in range(4):
        a("v_cvt_pk_bf16_f32 v%d, v%d, v%d" % (Q + k, TM + 2 * k, TM + 2 * k + 1))
    for i in range(8):
        a("v_mov_b32 v%d, 0" % (ACC + i))
    a("v_mov_b32 v%d, 0xff7fffff" % M)
    a("v_mov_b32 v%d, 0" % L)
    sWOB = 11; sWOB2 = 12
    a("s_mul_i32 s%d, s%d, 163840" % (sWOB, sHEAD))
    a("s_add_u32 s%d, s%d, 2560" % (sWOB2, sWOB))

    def issue_wo(i):
        for cb in range(5):
            so = sWOB if i < 2 else sWOB2
            off = cb * 256 + (i & 1) * 1280
            a("buffer_load_dwordx4 %s, v%d, s[%d:%d], s%d offen offset:%d" % (vr(WB + 4 * (i * 5 + cb), 4), vwo, SWO, SWO + 3, so, off), tag="wo")

    BL = [0, 8, 4, 12]
    NU = 16
    for u in range(NU):
        a.comment("unit %d" % u)
        a.wait_vm("k%d" % u)
        for j in range(4):
            a("v_dot2_f32_bf16 v%d, v%d, v%d, 0" % (T + j, KB + 4 * j, Q))
        for k in range(1, 4):
            for j in range(4):
                a("v_dot2_f32_bf16 v%d, v%d, v%d, v%d" % (T + j, KB + 4 * j + k, Q + k, T + j))
        if u + 1 < NU:
            issue_k(u + 1)
        treduce_bit3(a, [T, T + 1, T + 2, T + 3], [U, U + 1])
        treduce_bit2(a, [U, U + 1], [S])
        a("v_add_f32_dpp v%d, v%d, v%d quad_perm:[1,0,3,2] %s" % (S, S, S, DPPF))
        a("v_add_f32_dpp v%d, v%d, v%d quad_perm:[2,3,0,1] %s" % (S, S, S, DPPF))
        bf16r(a, S, S)
        a("v_mul_f32 v%d, %s, v%d" % (S, SCALE, S))
        bf16r(a, S, S)
        a("v_max_f32_dpp v%d, v%d, v%d row_ror:4 %s" % (X, S, S, DPPF))
        a("v_max_f32_dpp v%d, v%d, v%d row_ror:8 %s" % (X, X, X, DPPF))
        a("v_max_f32 v%d, v%d, v%d" % (X, X, M))
        a("v_cmp_gt_f32 vcc, v%d, v%d" % (X, M))
        skip = a.newlabel("attn_skip")
        a("s_cbranch_vccz %s" % skip)
        a("v_sub_f32 v%d, v%d, v%d" % (F, M, X))
        a("v_mul_f32 v%d, %s, v%d" % (F, LOG2E, F))
        a("v_exp_f32 v%d, v%d" % (F, F))
        a("v_mov_b32 v%d, v%d" % (M, X))
        for i in range(8):
            a("v_mul_f32 v%d, v%d, v%d" % (ACC + i, ACC + i, F))
        a("v_mul_f32 v%d, v%d, v%d" % (L, L, F))
        a.label(skip, pad=False)
        a("v_sub_f32 v%d, v%d, v%d" % (P, S, M))
        a("v_mul_f32 v%d, %s, v%d" % (P, LOG2E, P))
        a("v_exp_f32 v%d, v%d" % (P, P))
        a("v_cvt_pk_bf16_f32 v%d, v%d, 0" % (PL, P))
        a("v_cvt_pk_bf16_f32 v%d, 0, v%d" % (PH, P))
        a("v_add_f32 v%d, v%d, v%d" % (L, L, PH))
        a.wait_vm("v%d" % u)
        for j in range(4):
            for k in range(4):
                a("v_dot2c_f32_bf16_dpp v%d, v%d, v%d row_newbcast:%d %s" % (ACC + 2 * k, PL, VB + 4 * j + k, BL[j], DPPF))
                a("v_dot2c_f32_bf16_dpp v%d, v%d, v%d row_newbcast:%d %s" % (ACC + 2 * k + 1, PH, VB + 4 * j + k, BL[j], DPPF))
        if u + 1 < NU:
            issue_v(u + 1)
        if 4 <= u < 8:
            issue_wo(u - 4)
    a("v_add_f32_dpp v%d, v%d, v%d row_ror:4 %s" % (L, L, L, DPPF))
    a("v_add_f32_dpp v%d, v%d, v%d row_ror:8 %s" % (L, L, L, DPPF))
    MW = X
    a("v_mov_b32 v%d, v%d" % (MW, M))
    allreduce_rows(a, "v_max_f32", MW, t0)
    a("v_sub_f32 v%d, v%d, v%d" % (F, M, MW))
    a("v_mul_f32 v%d, %s, v%d" % (F, LOG2E, F))
    a("v_exp_f32 v%d, v%d" % (F, F))
    for i in range(8):
        a("v_mul_f32 v%d, v%d, v%d" % (ACC + i, ACC + i, F))
    a("v_mul_f32 v%d, v%d, v%d" % (L, L, F))
    allreduce_rows(a, "v_add_f32", L, t0)
    c = treduce_rows(a, list(range(ACC, ACC + 8)))
    a("s_lshl_b32 s%d, s%d, 9" % (sT, sW))
    a("v_add_u32 v%d, s%d, v%d" % (t0, sT, vtr))
    a("ds_write_b32 v%d, v%d offset:%d" % (t0, c[0], OP))
    a("ds_write_b32 v%d, v%d offset:%d" % (t0, c[1], OP + 16))
    a("s_lshl_b32 s%d, s%d, 3" % (sT, sW))
    a("v_mov_b32 v%d, s%d" % (t0, sT))
    a("v_mov_b32 v%d, v%d" % (T, MW))
    a("v_mov_b32 v%d, v%d" % (T + 1, L))
    a("ds_write_b64 v%d, %s offset:%d" % (t0, vr(T, 2), ML))
    a("s_waitcnt lgkmcnt(0)")
    a("s_barrier")
    MLR = TM
    OR_ = TM + 16
    FW = TM + 48
    a("v_mov_b32 v%d, 0" % t0)
    for i in range(4):
        a("ds_read_b128 %s, v%d offset:%d" % (vr(MLR + 4 * i, 4), t0, ML + 16 * i))
    for w in range(8):
        a("ds_read_b128 %s, v%d offset:%d" % (vr(OR_ + 4 * w, 4), vorow, OP + w * 512))
    a("s_waitcnt lgkmcnt(0)")
    MG = M; LG = L
    a("v_max_f32 v%d, v%d, v%d" % (MG, MLR, MLR + 2))
    for w in range(2, 8):
        a("v_max_f32 v%d, v%d, v%d" % (MG, MG, MLR + 2 * w))
    for w in range(8):
        a("v_sub_f32 v%d, v%d, v%d" % (FW + w, MLR + 2 * w, MG))
    for w in range(8):
        a("v_mul_f32 v%d, %s, v%d" % (FW + w, LOG2E, FW + w))
    for w in range(8):
        a("v_exp_f32 v%d, v%d" % (FW + w, FW + w))
    a("v_mul_f32 v%d, v%d, v%d" % (LG, FW, MLR + 1))
    for w in range(1, 8):
        a("v_fmac_f32 v%d, v%d, v%d" % (LG, FW + w, MLR + 2 * w + 1))
    O = T
    for i in range(4):
        a("v_mul_f32 v%d, v%d, v%d" % (O + i, FW, OR_ + i))
    for w in range(1, 8):
        for i in range(4):
            a("v_fmac_f32 v%d, v%d, v%d" % (O + i, FW + w, OR_ + 4 * w + i))
    OL = XH; OH = XH + 4
    for i in range(4):
        a("v_cvt_pk_bf16_f32 v%d, v%d, 0" % (OL + i, O + i))
        a("v_cvt_pk_bf16_f32 v%d, 0, v%d" % (OH + i, O + i))
    Y = TM
    for i in range(40):
        a("v_mov_b32 v%d, 0" % (Y + i))
    a.wait_vm("wo")
    for i in range(4):
        for cb in range(5):
            for k in range(4):
                w = WB + 4 * (i * 5 + cb) + k
                a("v_dot2c_f32_bf16 v%d, v%d, v%d" % (Y + cb * 8 + 2 * k, w, OL + i))
                a("v_dot2c_f32_bf16 v%d, v%d, v%d" % (Y + cb * 8 + 2 * k + 1, w, OH + i))
    c = treduce_rows(a, list(range(Y, Y + 40)))
    a("s_mul_i32 s%d, s%d, 2560" % (sT, sW))
    a("v_add_u32 v%d, s%d, v%d" % (t0, sT, vtr))
    for cb in range(5):
        a("ds_write_b32 v%d, v%d offset:%d" % (t0, c[2 * cb], YP + cb * 512))
        a("ds_write_b32 v%d, v%d offset:%d" % (t0, c[2 * cb + 1], YP + cb * 512 + 16))
    a("s_waitcnt lgkmcnt(0)")
    a("s_barrier")
    a("v_cmp_gt_u32 vcc, 160, v0")
    a("s_and_saveexec_b64 s[60:61], vcc")
    a("s_cbranch_execz attn_end")
    a("v_lshlrev_b32 v%d, 4, v0" % t0)
    for w in range(8):
        a("ds_read_b128 %s, v%d offset:%d" % (vr(TM + 4 * w, 4), t0, YP + w * 2560))
    a("s_waitcnt lgkmcnt(0)")
    for w in range(1, 8):
        for k in range(4):
            a("v_add_f32 v%d, v%d, v%d" % (TM + k, TM + k, TM + 4 * w + k))
    a("s_mul_i32 s%d, s%d, 2560" % (sT, sPIDX))
    a("s_add_u32 s62, s%d, s%d" % (S_WS, sT))
    a("s_addc_u32 s63, s%d, 0" % (S_WS + 1))
    a("global_store_dwordx4 v%d, %s, s[62:63]" % (t0, vr(TM, 4)))
    a("v_cmp_eq_u32 vcc, 0, v0")
    a("s_and_saveexec_b64 s[60:61], vcc")
    a("s_cbranch_execz attn_end")
    a("s_lshl_b32 s%d, s%d, 3" % (sT, sPIDX))
    a("s_add_u32 s%d, s%d, 0x%x" % (sT, sT, WS_ML))
    a("v_mov_b32 v%d, s%d" % (t0, sT))
    a("v_mov_b32 v%d, v%d" % (T, MG))
    a("v_mov_b32 v%d, v%d" % (T + 1, LG))
    a("global_store_dwordx2 v%d, %s, s[%d:%d]" % (t0, vr(T, 2), S_WS, S_WS + 1))
    a.label("attn_end", pad=False)
    a("s_endpgm")
    descs.append(descriptor(lab, V.next))
    return "; @launch kernel=%s grid=(256,1,1) block=(512,1,1) lds=%d" % (lab, LDS)


def k_reduce():
    lab = "red_kernel"
    kernel_begin(a, lab)
    V = Alloc(1)
    lane = V(); g = V(); t0 = V(); t1 = V(); vy = V(); vml = V(); idx = V()
    Y = V(4, 4); ML = V(4, 4); E0 = V(); E1 = V(); MX = V(); DEN = V(); WG_ = V(); R = V(8, 4); XV = V()
    sW, sB, sCB, sT = 3, 4, 5, 6
    a("s_cmp_ge_u32 s2, 80")
    a("s_cbranch_scc1 red_end")
    load_kernargs(a)
    a("v_and_b32 v%d, 63, v0" % lane)
    a("v_lshrrev_b32 v%d, 6, v0" % t0)
    a("v_readfirstlane_b32 s%d, v%d" % (sW, t0))
    a("v_lshrrev_b32 v%d, 4, v%d" % (g, lane))
    a("s_mul_i32 s%d, s2, 3277" % sB)
    a("s_lshr_b32 s%d, s%d, 16" % (sB, sB))
    a("s_mul_i32 s%d, s%d, 20" % (sT, sB))
    a("s_sub_u32 s%d, s2, s%d" % (sCB, sT))
    a("v_lshrrev_b32 v%d, 3, v0" % t0)
    a("s_lshl_b32 s%d, s%d, 6" % (sT, sB))
    a("v_add_u32 v%d, s%d, v%d" % (t0, sT, t0))
    a("v_mul_u32_u24 v%d, 2560, v%d" % (vy, t0))
    a("v_and_b32 v%d, 7, v0" % t1)
    a("v_lshl_add_u32 v%d, v%d, 4, v%d" % (vy, t1, vy))
    a("s_lshl_b32 s%d, s%d, 7" % (sT, sCB))
    a("v_add_u32 v%d, s%d, v%d" % (vy, sT, vy))
    a("v_lshrrev_b32 v%d, 1, v%d" % (vml, t0))
    a("v_lshlrev_b32 v%d, 4, v%d" % (vml, vml))
    a("v_add_u32 v%d, 0x%x, v%d" % (vml, WS_ML, vml))
    a("v_and_b32 v%d, 1, v%d" % (t0, t0))
    a("v_cmp_eq_u32 s[8:9], 1, v%d" % t0)
    a("s_waitcnt lgkmcnt(0)")
    a("global_load_dwordx4 %s, v%d, s[%d:%d]" % (vr(Y, 4), vy, S_WS, S_WS + 1), tag="y")
    a("global_load_dwordx4 %s, v%d, s[%d:%d]" % (vr(ML, 4), vml, S_WS, S_WS + 1), tag="y")
    a("v_and_b32 v%d, 31, v0" % t0)
    a("s_mul_i32 s%d, s%d, 640" % (sT, sB))
    a("s_lshl_b32 s7, s%d, 5" % sCB)
    a("s_add_u32 s%d, s%d, s7" % (sT, sT))
    a("v_add_u32 v%d, s%d, v%d" % (t0, sT, t0))
    eidx = V()
    a("v_mov_b32 v%d, v%d" % (eidx, t0))
    a("v_lshlrev_b32 v%d, 1, v%d" % (t0, t0))
    a("global_load_ushort v%d, v%d, s[%d:%d]" % (XV, t0, S_X, S_X + 1), tag="y")
    idx_row(a, idx, g, t0)
    a.wait_vm("y")
    a("v_max_f32 v%d, v%d, v%d" % (MX, ML, ML + 2))
    a("v_sub_f32 v%d, v%d, v%d" % (E0, ML, MX))
    a("v_sub_f32 v%d, v%d, v%d" % (E1, ML + 2, MX))
    a("v_mul_f32 v%d, %s, v%d" % (E0, LOG2E, E0))
    a("v_mul_f32 v%d, %s, v%d" % (E1, LOG2E, E1))
    a("v_exp_f32 v%d, v%d" % (E0, E0))
    a("v_exp_f32 v%d, v%d" % (E1, E1))
    a("v_mul_f32 v%d, v%d, v%d" % (DEN, E0, ML + 1))
    a("v_fmac_f32 v%d, v%d, v%d" % (DEN, E1, ML + 3))
    a("v_rcp_f32 v%d, v%d" % (DEN, DEN))
    a("v_cndmask_b32 v%d, v%d, v%d, s[8:9]" % (WG_, E0, E1))
    a("v_mul_f32 v%d, v%d, v%d" % (WG_, WG_, DEN))
    for i in range(4):
        a("v_mul_f32 v%d, v%d, v%d" % (Y + i, Y + i, WG_))
    c = treduce_rows(a, [Y, Y + 1, Y + 2, Y + 3])[0]
    a("v_add_f32_dpp v%d, v%d, v%d row_ror:8 %s" % (c, c, c, DPPF))
    a("v_lshl_add_u32 v%d, v%d, 2, v%d" % (t0, t1, idx))
    a("v_lshlrev_b32 v%d, 2, v%d" % (t0, t0))
    a("s_lshl_b32 s%d, s%d, 7" % (sT, sW))
    a("v_add_u32 v%d, s%d, v%d" % (t0, sT, t0))
    a("ds_write_b32 v%d, v%d" % (t0, c))
    a("s_waitcnt lgkmcnt(0)")
    a("s_barrier")
    a("v_cmp_gt_u32 vcc, 32, v0")
    a("s_and_saveexec_b64 s[60:61], vcc")
    a("s_cbranch_execz red_end")
    a("v_lshlrev_b32 v%d, 2, v0" % t0)
    for w in range(8):
        a("ds_read_b32 v%d, v%d offset:%d" % (R + w, t0, w * 128))
    a("s_waitcnt lgkmcnt(0)")
    for w in range(1, 8):
        a("v_add_f32 v%d, v%d, v%d" % (R, R, R + w))
    bf16r(a, R, R)
    a("v_lshlrev_b32 v%d, 16, v%d" % (XV, XV))
    a("v_add_f32 v%d, v%d, v%d" % (R, R, XV))
    bf16r(a, R, R)
    a("v_lshlrev_b32 v%d, 2, v%d" % (t0, eidx))
    a("v_add_u32 v%d, 0x%x, v%d" % (t0, WS_H, t0))
    a("global_store_dword v%d, v%d, s[%d:%d]" % (t0, R, S_WS, S_WS + 1))
    a.label("red_end", pad=False)
    a("s_endpgm")
    descs.append(descriptor(lab, V.next))
    return "; @launch kernel=%s grid=(80,1,1) block=(512,1,1) lds=1024" % lab


def lane_map32(a, d, lane, t0, t1, with_bit0):
    pass


def k_gateup():
    lab = "gu_kernel"
    kernel_begin(a, lab)
    V = Alloc(1)
    lane = V(); g = V(); t0 = V(); t1 = V(); vw = V(); vh = V(); idx = V(); bank = V()
    W = V(20, 4); H = V(20, 4); A_ = V(32, 4); E = V(10, 2); LT = V(16); R = V(8, 4)
    sW, sW3, sT, sT2 = 3, 4, 5, 6
    SW = 40
    HN, PART = 0, 10240
    LDS = PART + 8 * 256
    a("s_cmp_ge_u32 s2, 108")
    a("s_cbranch_scc1 gu_end")
    load_kernargs(a)
    a("v_and_b32 v%d, 63, v0" % lane)
    a("v_lshrrev_b32 v%d, 6, v0" % t0)
    a("v_readfirstlane_b32 s%d, v%d" % (sW, t0))
    a("v_lshrrev_b32 v%d, 4, v%d" % (g, lane))
    a("s_and_b32 s%d, s%d, 3" % (sW3, sW))
    a("v_lshrrev_b32 v%d, 1, v%d" % (t0, lane))
    a("s_mul_i32 s%d, s%d, 160" % (sT, sW3))
    a("v_add_u32 v%d, s%d, v%d" % (t0, sT, t0))
    a("v_lshlrev_b32 v%d, 4, v%d" % (vh, t0))
    a("v_mul_u32_u24 v%d, 3456, v%d" % (vw, t0))
    a("v_and_b32 v%d, 1, v%d" % (t1, lane))
    a("v_lshl_add_u32 v%d, v%d, 4, v%d" % (vw, t1, vw))
    a("s_waitcnt lgkmcnt(0)")
    a("s_cmp_lt_u32 s%d, 4" % sW)
    a("s_cselect_b32 s%d, s%d, s%d" % (SW, S_WG, S_WU))
    a("s_cselect_b32 s%d, s%d, s%d" % (SW + 1, S_WG + 1, S_WU + 1))
    a("s_mov_b32 s%d, 0x%x" % (SW + 2, 640 * 3456))
    a("s_mov_b32 s%d, 0x20000" % (SW + 3))
    a("v_lshlrev_b32 v%d, 3, v%d" % (t0, lane))
    a("s_mul_i32 s%d, s%d, 2560" % (sT, sW3))
    a("s_add_u32 s%d, s%d, 0x%x" % (sT, sT, WS_H))
    a("v_add_u32 v%d, s%d, v%d" % (t0, sT, t0))
    for i in range(5):
        a("global_load_dwordx2 %s, v%d, s[%d:%d] offset:%d" % (vr(E + 2 * i, 2), t0, S_WS, S_WS + 1, i * 512), tag="h")
    a("s_lshl_b32 s%d, s2, 5" % sT)
    for j in range(5):
        a("buffer_load_dwordx4 %s, v%d, s[%d:%d], s%d offen" % (vr(W + 4 * j, 4), vw, SW, SW + 3, sT), tag="w")
        if j < 4:
            a("s_add_u32 s%d, s%d, %d" % (sT, sT, 32 * 3456))
    a.wait_vm("h")
    El = list(range(E, E + 10))
    layernorm10(a, El, list(range(LT, LT + 16)))
    a("v_lshlrev_b32 v%d, 5, v%d" % (t0, lane))
    a("s_lshl_b32 s%d, s%d, 2" % (sT, sW3))
    a("v_add_u32 v%d, s%d, v%d" % (t0, sT, t0))
    for i in range(5):
        a("ds_write_b32 v%d, v%d offset:%d" % (t0, El[2 * i], HN + i * 2048))
        a("ds_write_b32 v%d, v%d offset:%d" % (t0, El[2 * i + 1], HN + i * 2048 + 16))
    for i in range(32):
        a("v_mov_b32 v%d, 0" % (A_ + i))
    a("s_waitcnt lgkmcnt(0)")
    a("s_barrier")
    for j in range(5):
        a("ds_read_b128 %s, v%d offset:%d" % (vr(H + 4 * j, 4), vh, HN + j * 512))
    a("s_waitcnt lgkmcnt(0)")
    a.wait_vm("w")
    for j in range(5):
        for b in range(4):
            a("v_lshrrev_b32 v%d, 16, v%d" % (t0, H + 4 * j + b))
            for k in range(4):
                a("v_dot2c_f32_bf16 v%d, v%d, v%d" % (A_ + b * 8 + 2 * k, W + 4 * j + k, t0))
                a("v_dot2c_f32_bf16 v%d, v%d, v%d" % (A_ + b * 8 + 2 * k + 1, W + 4 * j + k, H + 4 * j + b))
    c = treduce_rows(a, list(range(A_, A_ + 32)))
    u = treduce_bit3(a, c, [R, R + 1, R + 2, R + 3])
    z = treduce_bit2(a, u, [R + 4, R + 5])
    for r in z:
        a("v_add_f32_dpp v%d, v%d, v%d quad_perm:[2,3,0,1] %s" % (r, r, r, DPPF))
    idx_row(a, idx, g, t0)
    a("v_bfe_u32 v%d, v%d, 2, 1" % (t0, lane))
    a("v_lshl_add_u32 v%d, v%d, 4, v%d" % (idx, t0, idx))
    a("v_bfe_u32 v%d, v%d, 3, 1" % (t0, lane))
    a("v_lshl_add_u32 v%d, v%d, 2, v%d" % (idx, t0, idx))
    a("v_lshl_add_u32 v%d, v%d, 3, v%d" % (idx, t1, idx))
    a("v_lshlrev_b32 v%d, 2, v%d" % (idx, idx))
    a("s_lshl_b32 s%d, s%d, 8" % (sT, sW))
    a("v_add_u32 v%d, s%d, v%d" % (idx, sT, idx))
    a("ds_write_b32 v%d, v%d offset:%d" % (idx, z[0], PART))
    a("ds_write_b32 v%d, v%d offset:%d" % (idx, z[1], PART + 128))
    a("s_waitcnt lgkmcnt(0)")
    a("s_barrier")
    a("s_cmp_lg_u32 s%d, 0" % sW)
    a("s_cbranch_scc1 gu_end")
    a("v_lshlrev_b32 v%d, 2, v0" % t0)
    for w in range(8):
        a("ds_read_b32 v%d, v%d offset:%d" % (R + w, t0, PART + w * 256))
    a("s_waitcnt lgkmcnt(0)")
    for w in (1, 2, 3):
        a("v_add_f32 v%d, v%d, v%d" % (R, R, R + w))
        a("v_add_f32 v%d, v%d, v%d" % (R + 4, R + 4, R + 4 + w))
    G, U_ = R, R + 4
    bf16r(a, G, G)
    bf16r(a, U_, U_)
    x2, e = R + 1, R + 2
    a("v_mul_f32 v%d, v%d, v%d" % (x2, G, G))
    a("v_mul_f32 v%d, 0x3d372713, v%d" % (x2, x2))
    a("v_fma_f32 v%d, v%d, v%d, v%d" % (e, x2, G, G))
    a("v_mul_f32 v%d, 0xc0135761, v%d" % (e, e))
    a("v_exp_f32 v%d, v%d" % (e, e))
    a("v_add_f32 v%d, 1.0, v%d" % (e, e))
    a("v_rcp_f32 v%d, v%d" % (e, e))
    a("v_mul_f32 v%d, v%d, v%d" % (G, G, e))
    bf16r(a, G, G)
    a("v_mul_f32 v%d, v%d, v%d" % (G, G, U_))
    bf16r(a, G, G)
    a("v_and_b32 v%d, 15, v0" % t0)
    a("v_lshlrev_b32 v%d, 4, v%d" % (t0, t0))
    a("v_lshrrev_b32 v%d, 4, v0" % t1)
    a("v_lshl_add_u32 v%d, v%d, 2, v%d" % (t0, t1, t0))
    a("s_lshl_b32 s%d, s2, 8" % sT)
    a("s_add_u32 s%d, s%d, 0x%x" % (sT, sT, WS_G))
    a("v_add_u32 v%d, s%d, v%d" % (t0, sT, t0))
    a("global_store_dword v%d, v%d, s[%d:%d]" % (t0, G, S_WS, S_WS + 1))
    a.label("gu_end", pad=False)
    a("s_endpgm")
    descs.append(descriptor(lab, V.next))
    return "; @launch kernel=%s grid=(108,1,1) block=(512,1,1) lds=%d" % (lab, LDS)


def k_down():
    lab = "down_kernel"
    kernel_begin(a, lab)
    V = Alloc(1)
    lane = V(); g = V(); t0 = V(); t1 = V(); vw = V(); vg = V(); idx = V(); HV = V(); eidx = V()
    W = V(16, 4); G = V(16, 4); A_ = V(32, 4); R = V(8, 4)
    sW, sT, sT2 = 3, 5, 6
    SW, SG, SO = 40, 44, 48
    a("s_cmp_ge_u32 s2, 80")
    a("s_cbranch_scc1 down_end")
    load_kernargs(a)
    a("v_and_b32 v%d, 63, v0" % lane)
    a("v_lshrrev_b32 v%d, 6, v0" % t0)
    a("v_readfirstlane_b32 s%d, v%d" % (sW, t0))
    a("v_lshrrev_b32 v%d, 4, v%d" % (g, lane))
    a("v_mul_u32_u24 v%d, 1280, v%d" % (vw, lane))
    a("v_lshlrev_b32 v%d, 4, v%d" % (vg, lane))
    a("s_waitcnt lgkmcnt(0)")
    srd(a, SW, S_WD, 1728 * 1280)
    srd(a, SG, S_WS, 1728 * 16, off=WS_G)
    srd(a, SO, S_OUT, 5120)
    a("s_mul_i32 s%d, s%d, 81920" % (sT, sW))
    a("s_lshl_b32 s%d, s2, 4" % sT2)
    a("s_add_u32 s%d, s%d, s%d" % (sT, sT, sT2))
    a("s_lshl_b32 s%d, s%d, 10" % (sT2, sW))
    for j in range(4):
        a("buffer_load_dwordx4 %s, v%d, s[%d:%d], s%d offen" % (vr(W + 4 * j, 4), vw, SW, SW + 3, sT), tag="w")
        a("buffer_load_dwordx4 %s, v%d, s[%d:%d], s%d offen" % (vr(G + 4 * j, 4), vg, SG, SG + 3, sT2), tag="w")
        if j < 3:
            a("s_add_u32 s%d, s%d, %d" % (sT, sT, 8 * 81920))
            a("s_add_u32 s%d, s%d, %d" % (sT2, sT2, 8 * 1024))
    a("v_bfe_u32 v%d, v0, 3, 2" % t0)
    a("v_mul_u32_u24 v%d, 640, v%d" % (t0, t0))
    a("v_and_b32 v%d, 7, v0" % t1)
    a("v_add_u32 v%d, v%d, v%d" % (t0, t0, t1))
    a("s_lshl_b32 s%d, s2, 3" % sT)
    a("v_add_u32 v%d, s%d, v%d" % (eidx, sT, t0))
    a("v_lshlrev_b32 v%d, 2, v%d" % (t0, eidx))
    a("v_add_u32 v%d, 0x%x, v%d" % (t0, WS_H, t0))
    a("global_load_dword v%d, v%d, s[%d:%d]" % (HV, t0, S_WS, S_WS + 1), tag="w")
    for i in range(32):
        a("v_mov_b32 v%d, 0" % (A_ + i))
    a.wait_vm("w")
    for j in range(4):
        for b in range(4):
            a("v_lshrrev_b32 v%d, 16, v%d" % (t0, G + 4 * j + b))
            for k in range(4):
                a("v_dot2c_f32_bf16 v%d, v%d, v%d" % (A_ + b * 8 + 2 * k, W + 4 * j + k, t0))
                a("v_dot2c_f32_bf16 v%d, v%d, v%d" % (A_ + b * 8 + 2 * k + 1, W + 4 * j + k, G + 4 * j + b))
    c = treduce_rows(a, list(range(A_, A_ + 32)))
    u = treduce_bit3(a, c, [R, R + 1, R + 2, R + 3])
    z = treduce_bit2(a, u, [R + 4, R + 5])
    for r in z:
        a("v_add_f32_dpp v%d, v%d, v%d quad_perm:[2,3,0,1] %s" % (r, r, r, DPPF))
    for r in z:
        a("v_add_f32_dpp v%d, v%d, v%d quad_perm:[1,0,3,2] %s" % (r, r, r, DPPF))
    idx_row(a, idx, g, t0)
    a("v_bfe_u32 v%d, v%d, 2, 1" % (t0, lane))
    a("v_lshl_add_u32 v%d, v%d, 3, v%d" % (idx, t0, idx))
    a("v_bfe_u32 v%d, v%d, 3, 1" % (t0, lane))
    a("v_lshl_add_u32 v%d, v%d, 2, v%d" % (idx, t0, idx))
    a("v_lshlrev_b32 v%d, 2, v%d" % (idx, idx))
    a("s_lshl_b32 s%d, s%d, 7" % (sT, sW))
    a("v_add_u32 v%d, s%d, v%d" % (idx, sT, idx))
    a("ds_write_b32 v%d, v%d" % (idx, z[0]))
    a("ds_write_b32 v%d, v%d offset:64" % (idx, z[1]))
    a("s_waitcnt lgkmcnt(0)")
    a("s_barrier")
    a("v_cmp_gt_u32 vcc, 32, v0")
    a("s_and_saveexec_b64 s[60:61], vcc")
    a("s_cbranch_execz down_end")
    a("v_lshlrev_b32 v%d, 2, v0" % t0)
    for w in range(8):
        a("ds_read_b32 v%d, v%d offset:%d" % (R + w, t0, w * 128))
    a("s_waitcnt lgkmcnt(0)")
    for w in range(1, 8):
        a("v_add_f32 v%d, v%d, v%d" % (R, R, R + w))
    bf16r(a, R, R)
    a("v_add_f32 v%d, v%d, v%d" % (R, R, HV))
    a("v_cvt_pk_bf16_f32 v%d, v%d, v%d" % (R, R, R))
    a("v_lshlrev_b32 v%d, 1, v%d" % (t0, eidx))
    a("buffer_store_short v%d, v%d, s[%d:%d], 0 offen" % (R, t0, SO, SO + 3))
    a.label("down_end", pad=False)
    a("s_endpgm")
    descs.append(descriptor(lab, V.next))
    return "; @launch kernel=%s grid=(80,1,1) block=(512,1,1) lds=1024" % lab


launches = [k_attn(), k_reduce(), k_gateup(), k_down()]
out = HEADER_COMMENTS + "\n".join(launches) + "\n" + '.amdgcn_target "amdgcn-amd-amdhsa--gfx950"\n.text\n' + a.text() + '.section .rodata,"a"\n' + "".join(descs)
fn = sys.argv[1] if len(sys.argv) > 1 else "v1.s"
open(fn, "w").write(out)
print("wrote", fn, len(out))
```
